```python
import torch

def _softmax(x, axis=-1):
    return torch.softmax(x, dim=axis)
def _gelu(x):
    return torch.nn.functional.gelu(x, approximate="tanh")
def _silu(x):
    return torch.nn.functional.silu(x)
def _sigmoid(x):
    return torch.sigmoid(x)
def _layernorm(x, axis=-1, eps=1e-5):
    m = x.mean(dim=axis, keepdim=True)
    v = x.var(dim=axis, keepdim=True, unbiased=False)
    return (x - m) / torch.sqrt(v + eps)
def _scatter_add(tgt, idx, src, axis=0):
    return tgt.clone().index_add_(axis, idx, src)
def _segment_sum(src, seg, n):
    out = torch.zeros((n,) + src.shape[1:], dtype=src.dtype)
    return out.index_add_(0, seg, src)
def _pad(x, pw):
    flat = tuple(v for pair in reversed(pw) for v in pair)
    return torch.nn.functional.pad(x, flat)

kernel_name = 'parallel_sum__ssm_conv_h3__mixer_channel_mlp__prompt'

def setup_inputs():

    _w = (lambda a: (lambda t: t.to(torch.bfloat16) if t.is_floating_point() else t)(torch.as_tensor(a)))
    def _A_setup():
        B, S, D = 1, 2048, 1024
        ks = 4
        return {
            "q": _w((lambda *s: torch.randn(*s, dtype=torch.bfloat16) * 0.05)(B, S, D)),
            "k": _w((lambda *s: torch.randn(*s, dtype=torch.bfloat16) * 0.2)(B, S, D)),
            "v": _w((lambda *s: torch.randn(*s, dtype=torch.bfloat16) * 0.2)(B, S, D)),
            "shift_k": _w((lambda *s: torch.randn(*s, dtype=torch.bfloat16) * 0.2)(D, ks) * 0.5),
            "ssm_k": _w((lambda *s: torch.randn(*s, dtype=torch.bfloat16) * 0.8)(D, S) * (1.0 / S ** 0.5)),
            "ssm_D": _w((lambda *s: torch.randn(*s, dtype=torch.bfloat16) * 0.2)(D)),
        }
    _A_in = _A_setup()

    def _B_setup():
        B, S, D, F = 1, 2048, 1024, 3584
        return {
            "x": _w((lambda *s: torch.randn(*s, dtype=torch.bfloat16) * 0.05)(B, S, D)),
            "w1": _w((lambda *s: torch.randn(*s, dtype=torch.bfloat16) * 0.8)(D, F) * (D ** -0.5)),
            "b1": _w((lambda *s: torch.randn(*s, dtype=torch.bfloat16) * 0.4)(F)),
            "w2": _w((lambda *s: torch.randn(*s, dtype=torch.bfloat16) * 0.05)(F, D) * (F ** -0.5)),
            "b2": _w((lambda *s: torch.randn(*s, dtype=torch.bfloat16) * 0.05)(D)),
        }
    _B_in = _B_setup()

    return {
        "A_q": _A_in["q"],
        "A_k": _A_in["k"],
        "A_v": _A_in["v"],
        "A_shift_k": _A_in["shift_k"],
        "A_ssm_k": _A_in["ssm_k"],
        "A_ssm_D": _A_in["ssm_D"],
        "B_x": _B_in["x"],
        "B_w1": _B_in["w1"],
        "B_b1": _B_in["b1"],
        "B_w2": _B_in["w2"],
        "B_b2": _B_in["b2"],
    }

def reference(A_q, A_k, A_v, A_shift_k, A_ssm_k, A_ssm_D, B_x, B_w1, B_b1, B_w2, B_b2):
    def _A_ref(q, k, v, shift_k, ssm_k, ssm_D):
        B, S, D = q.shape
        ks = shift_k.shape[-1]
        k_pad = _pad(k, ((0, 0), (ks - 1, 0), (0, 0)))
        k_shift = torch.zeros_like(k)
        for t in range(ks):
            k_shift = k_shift + k_pad[:, t:t + S, :] * shift_k[:, ks - 1 - t][None, None, :]
        kv = k_shift * v
        L = 2 * S
        kv_pad = _pad(kv, ((0, 0), (0, S), (0, 0)))
        kf_pad = _pad(ssm_k, ((0, 0), (0, S)))
        kv_f = (lambda x, axes=(-2,-1): torch.fft.rfft2(x.float(), dim=axes))(kv_pad[:, None, :, :], axes=(1, 2))
        kf_f = (lambda x, axes=(-2,-1): torch.fft.rfft2(x.float(), dim=axes))(kf_pad[:, None, :], axes=(1, 2))
        kf_f = (lambda x, *d: x.permute(*d))(kf_f, 1, 2, 0)
        y_f = kv_f * kf_f[None, :, :, :]
        y = (lambda x, s, axes=(-2,-1): torch.fft.irfft2(x, s=s, dim=axes).to(torch.bfloat16))(y_f, (1, L), axes=(1, 2))[:, 0, :S, :]
        y = y + kv * ssm_D[None, None, :]
        return q * y

    def _B_ref(x, w1, b1, w2, b2):
        y = _layernorm(x, axis=-1)
        h = _gelu(torch.einsum("bsd,df->bsf", y, w1) + b1)
        return torch.einsum("bsf,fd->bsd", h, w2) + b2

    x = A_q
    xn = _layernorm(x, axis=-1)
    return x + _A_ref(xn, A_k, A_v, A_shift_k, A_ssm_k, A_ssm_D) + _B_ref(xn, B_w1, B_b1, B_w2, B_b2)
```

```python
class Asm:
    def __init__(self):
        self.lines = []
        self._lbl = 0

    def __call__(self, s):
        for ln in s.split("\n"):
            ln = ln.strip()
            if ln:
                self.lines.append("    " + ln if not ln.endswith(":") else ln)

    def raw(self, s):
        self.lines.append(s)

    def c(self, s):
        self.lines.append("    ; " + s)

    def label(self, name):
        self.lines.append(name + ":")

    def newlabel(self, base="L"):
        self._lbl += 1
        return f"{base}_{self._lbl}"

    def text(self):
        return "\n".join(self.lines) + "\n"


def v(i, n=1):
    return f"v{i}" if n == 1 else f"v[{i}:{i+n-1}]"

def a(i, n=1):
    return f"a{i}" if n == 1 else f"a[{i}:{i+n-1}]"

def s(i, n=1):
    return f"s{i}" if n == 1 else f"s[{i}:{i+n-1}]"


def interleave(main, fill, start=0, every=1, per=1):
    out = []
    f = list(fill)
    for i, m in enumerate(main):
        out.append(m)
        if i >= start and (i - start) % every == 0:
            for _ in range(per):
                if f:
                    x = f.pop(0)
                    out.extend(x if isinstance(x, list) else [x])
    for x in f:
        out.extend(x if isinstance(x, list) else [x])
    return out


def place(main, slots):
    out = []
    for i, m in enumerate(main):
        out.append(m)
        for x in slots.get(i, []):
            out.append(x)
    return out


def kernel_header(name):
    return f""".text
.globl {name}
.p2align 8
.type {name},@function
{name}:
"""


def kernel_desc(name, vgpr, agpr, sgpr=102, wgy=False):
    accum = (vgpr + 3) // 4 * 4
    nfv = accum + agpr if agpr else vgpr
    y = "  .amdhsa_system_sgpr_workgroup_id_y 1\n" if wgy else ""
    return f""".section .rodata,"a"
.p2align 6
.amdhsa_kernel {name}
  .amdhsa_next_free_vgpr {nfv}
  .amdhsa_next_free_sgpr {sgpr}
  .amdhsa_accum_offset {accum}
  .amdhsa_group_segment_fixed_size 0
  .amdhsa_kernarg_size 112
  .amdhsa_user_sgpr_count 2
  .amdhsa_user_sgpr_kernarg_segment_ptr 1
  .amdhsa_system_sgpr_workgroup_id_x 1
{y}.end_amdhsa_kernel
"""
```

```python
import sys, json
from asmlib import *

NAME = "parallel_sum__ssm_conv_h3__mixer_channel_mlp__prompt_kernel"

WS_H     = 0x0000000
WS_UP    = 0x1000000
WS_Y4    = 0x1400000
WS_XCH   = 0x1800000
WS_STATS = 0x2000000
WS_CS    = 0x2010000
WS_FLAG  = 0x2100000
F_RB = WS_FLAG + 0x0000
F_CB = WS_FLAG + 0x1000
F_H  = WS_FLAG + 0x2000
F_Y  = WS_FLAG + 0x3000
F_X  = WS_FLAG + 0x4000
WS_STAMP = 0x8000000

STAGE = 45056
WREG = 16384
L_U    = 114688
U_PS   = 1344
U_CH   = 5376
L_F    = 136192
F_CH   = 4160
L_CS   = 152832
L_YT   = 114688

S_X, S_W1, S_WS, S_K, S_V, S_SH, S_SK, S_D, S_B1, S_W2, S_B2, S_OUT, S_DBG = range(4, 56, 4)
sRB, sCB, sWV, sMH, sNH = 56, 57, 58, 59, 60
sOffX, sOffW, sCur, sNxt, sDma, sM0X, sM0W, sCnt, sKold = 61, 62, 63, 64, 65, 66, 67, 68, 69
sT = 70
sNON = 78
sEX = 80
sC0, sC1 = 82, 84
sU = 86
sST = 94

def srd(r): return f"s[{r}:{r+3}]"


def sched(m, items):
    slots = {}
    for p, g in items:
        slots.setdefault(max(0, min(p, len(m) - 1)), []).extend(g if isinstance(g, list) else [g])
    return place(m, slots)

vDX, vDW = 2, 6
vLX0, vLX1, vLWe, vLWo, vLW6 = 13, 14, 15, 16, 17
vX0, vX1, vWe, vWo, vW6 = 18, 19, 20, 21, 22
vT = 24
FW = [32, 60]
FX = [88, 104]
vONE = 120
ACC1 = 128
vM = 240

class K:
    def __init__(self, opts):
        self.o = opts
        self.A = Asm()

    def stamp(self, idx):
        if self.o.get("stamp"):
            self.A(f"s_memrealtime s[{sST}:{sST+1}]\ns_memtime s[{sST+2}:{sST+3}]\ns_waitcnt lgkmcnt(0)\nv_writelane_b32 v126, s{sST}, {idx}\nv_writelane_b32 v126, s{sST+2}, {idx+16}")

    def stamp_flush(self):
        if self.o.get("stamp"):
            self.A(f"""
            s_cmp_lg_u32 s{sWV}, 0
            s_cbranch_scc1 L_nostamp
            s_lshl_b32 s{sT}, s2, 7
            s_add_u32 s{sT}, s{sT}, {WS_STAMP}
            v_lshlrev_b32 v127, 2, v1
            v_add_u32 v127, s{sT}, v127
            s_mov_b32 exec_lo, -1
            s_mov_b32 exec_hi, 0
            buffer_store_dword v126, v127, {srd(S_WS)}, 0 offen
            s_mov_b64 exec, -1
            L_nostamp:
            """)

    def check_flags(self, nlanes, vdst):
        return f"""
        v_cmp_ne_u32 vcc, s{sNON}, {v(vdst)}
        v_cmp_ne_u32 s[{sT+4}:{sT+5}], s{sNON+1}, {v(vdst+1)}
        s_or_b64 vcc, vcc, s[{sT+4}:{sT+5}]
        s_and_b64 vcc, vcc, {hex((1 << nlanes) - 1) if nlanes <= 6 else f"s[{sT+2}:{sT+3}]"}
        """

    def poll(self, nlanes, vaddr, vdst, label, loaded=False):
        A = self.A
        mask = (1 << nlanes) - 1
        A(f"s_mov_b32 s{sT+6}, 0\ns_mov_b32 s{sT+2}, {hex(mask & 0xffffffff)}\ns_mov_b32 s{sT+3}, {hex(mask >> 32)}")
        if loaded:
            A(f"s_branch {label}_chk")
        A(f"""
        {label}:
        buffer_load_dwordx2 {v(vdst,2)}, {v(vaddr)}, {srd(S_WS)}, 0 offen sc1
        s_waitcnt vmcnt(0)
        {label}_chk:
        v_cmp_ne_u32 vcc, s{sNON}, {v(vdst)}
        v_cmp_ne_u32 s[{sT+4}:{sT+5}], s{sNON+1}, {v(vdst+1)}
        s_add_u32 s{sT+6}, s{sT+6}, 1
        s_nop 0
        s_or_b64 vcc, vcc, s[{sT+4}:{sT+5}]
        s_and_b64 vcc, vcc, s[{sT+2}:{sT+3}]
        s_cmp_gt_u32 s{sT+6}, 0x20000
        s_cbranch_scc1 {label}_done
        s_cbranch_vccnz {label}
        {label}_done:
        """)

    def put_flags(self, vaddr, nlanes, vtmp):
        self.A(f"""
        v_mov_b32 {v(vtmp)}, s{sNON}
        v_mov_b32 {v(vtmp+1)}, s{sNON+1}
        s_mov_b64 exec, {hex((1 << nlanes) - 1)}
        buffer_store_dwordx2 {v(vtmp,2)}, {v(vaddr)}, {srd(S_WS)}, 0 offen sc1
        s_mov_b64 exec, -1
        """)

    def setup(self):
        A = self.A
        A("s_cmp_ge_u32 s2, 256\ns_cbranch_scc1 L_end")
        self.ptrs = [(S_X, 0, 0x400000), (S_W1, 56, 0x700000), (S_WS, 104, 0x10000000), (S_K, 8, 0x400000), (S_V, 16, 0x400000),
                (S_SH, 24, 8192), (S_SK, 32, 0x400000), (S_D, 40, 2048), (S_B1, 64, 7168), (S_W2, 72, 0x700000),
                (S_B2, 80, 2048), (S_OUT, 88, 0x400000), (S_DBG, 96, 256)]
        for r, off, _ in self.ptrs:
            A(f"s_load_dwordx2 s[{r}:{r+1}], s[0:1], {off}")
        A(f"""
        v_and_b32 v1, 63, v0
        v_lshrrev_b32 {v(vT)}, 6, v0
        s_and_b32 s{sT}, s2, 7
        v_readfirstlane_b32 s{sWV}, {v(vT)}
        s_lshr_b32 s{sT+1}, s2, 3
        s_and_b32 s{sRB}, s{sT}, 1
        s_lshl_b32 s{sRB}, s{sRB}, 3
        s_and_b32 s{sT+2}, s{sT+1}, 7
        s_add_u32 s{sRB}, s{sRB}, s{sT+2}
        s_lshr_b32 s{sCB}, s{sT}, 1
        s_lshl_b32 s{sCB}, s{sCB}, 2
        s_lshr_b32 s{sT+2}, s{sT+1}, 3
        s_add_u32 s{sCB}, s{sCB}, s{sT+2}
        s_lshr_b32 s{sMH}, s{sWV}, 1
        s_and_b32 s{sNH}, s{sWV}, 1
        """)
        T = vT
        A(f"""
        v_lshrrev_b32 {v(T)}, 3, v1
        v_and_b32 {v(T+1)}, 7, v1
        v_xor_b32 {v(T+1)}, {v(T+1)}, {v(T)}
        v_lshlrev_b32 {v(T+1)}, 4, {v(T+1)}
        s_lshl_b32 s{sT}, s{sRB}, 7
        s_lshl_b32 s{sT+1}, s{sWV}, 5
        s_add_u32 s{sT}, s{sT}, s{sT+1}
        v_add_u32 {v(T)}, s{sT}, {v(T)}
        v_lshlrev_b32 {v(T)}, 11, {v(T)}
        v_add_u32 {v(vDX)}, {v(T)}, {v(T+1)}
        """)
        for j in range(1, 4):
            A(f"v_add_u32 {v(vDX+j)}, {j*(16384-1024)}, {v(vDX)}")
        A(f"""
        s_mul_i32 s{sT}, s{sWV}, {16*7168}
        s_mul_i32 s{sT+1}, s{sCB}, 448
        s_add_u32 s{sT}, s{sT}, s{sT+1}
        """)
        for j in range(7):
            imm = (j % 4) * 1024
            A(f"""
            v_add_u32 {v(T)}, {64*j}, v1
            v_mul_u32_u24 {v(T+1)}, 2341, {v(T)}
            v_lshrrev_b32 {v(T+1)}, 16, {v(T+1)}
            v_mul_u32_u24 {v(T+2)}, 28, {v(T+1)}
            v_sub_u32 {v(T+2)}, {v(T)}, {v(T+2)}
            v_lshrrev_b32 {v(T+3)}, 2, {v(T+1)}
            v_and_b32 {v(T+3)}, 2, {v(T+3)}
            v_xor_b32 {v(T+2)}, {v(T+2)}, {v(T+3)}
            v_mul_u32_u24 {v(T+1)}, 7168, {v(T+1)}
            v_lshl_add_u32 {v(T+1)}, {v(T+2)}, 4, {v(T+1)}
            v_add_u32 {v(T+1)}, s{sT}, {v(T+1)}
            v_subrev_u32 {v(vDW+j)}, {imm}, {v(T+1)}
            """)
        A(f"""
        s_lshl_b32 s{sM0X}, s{sWV}, 12
        s_mul_i32 s{sM0W}, s{sWV}, 7168
        s_add_u32 s{sM0W}, s{sM0W}, {WREG}
        """)
        for r, _, sz in self.ptrs:
            A(f"s_mov_b32 s{r+2}, {hex(sz)}\ns_mov_b32 s{r+3}, 0x20000")
        A("s_waitcnt lgkmcnt(0)")

    def nonce_publish(self):
        A = self.A
        A(f"""
        s_or_b32 s{sT}, s2, s{sWV}
        s_cmp_lg_u32 s{sT}, 0
        s_cbranch_scc1 L_nononce
        s_memrealtime s[{sT+2}:{sT+3}]
        s_waitcnt lgkmcnt(0)
        s_or_b32 s{sT+2}, s{sT+2}, 1
        v_mov_b32 {v(vT)}, s{sT+2}
        v_mov_b32 {v(vT+1)}, s{sT+3}
        v_mov_b32 {v(vT+2)}, 0
        s_mov_b64 exec, 1
        buffer_store_dwordx2 {v(vT,2)}, {v(vT+2)}, {srd(S_DBG)}, 0 offen sc1
        s_mov_b64 exec, -1
        L_nononce:
        """)

    def g1_dma(self, sreg):
        L = []
        for j in range(4):
            g = []
            if j == 0: g += [f"s_add_u32 m0, s{sreg}, s{sM0X}"]
            g += [f"buffer_load_dwordx4 {v(vDX+j)}, {srd(S_X)}, s{sOffX} offen offset:{j*1024} lds"]
            L.append(g)
        for j in range(7):
            g = []
            if j == 0: g += [f"s_add_u32 m0, s{sreg}, s{sM0W}"]
            if j == 4: g += [f"s_add_u32 m0, m0, 4096"]
            g += [f"buffer_load_dwordx4 {v(vDW+j)}, {srd(S_W1)}, s{sOffW} offen offset:{(j%4)*1024} lds"]
            L.append(g)
        return L

    def g1_m0(self, j, sreg):
        if j < 4: return [f"s_add_u32 m0, s{sreg}, s{sM0X}"]
        if j < 8: return [f"s_add_u32 m0, s{sreg}, s{sM0W}"]
        return [f"s_add_u32 m0, s{sreg}, s{sM0W}", "s_add_u32 m0, m0, 4096"]

    def g1_emit_dmas(self, groups):
        for g in groups:
            for x in g[:-1]: self.A(x)
            if len(g) > 1: self.A("s_nop 0")
            self.A(g[-1])

    def g1_next_off(self):
        return [f"s_cmp_ge_u32 s{sKold}, s{sRB}", f"s_addc_u32 s{sT}, s{sKold}, 0", f"s_lshl_b32 s{sOffX}, s{sT}, 7",
                f"s_mul_i32 s{sOffW}, s{sT}, {64*7168}", f"s_add_u32 s{sKold}, s{sKold}, 1"]

    def g1_reads(self, sub, fs):
        xb = vX0 if sub == 0 else vX1
        def xr(mt): return f"ds_read_b128 {v(FX[fs]+4*mt,4)}, {v(xb)} offset:{mt*2048}"
        def wr(j, h):
            if j == 6: base, off = vW6, 0
            else: base, off = (vWe if j % 2 == 0 else vWo), j*32
            return f"ds_read_b64_tr_b16 {v(FW[fs]+4*j+2*h,2)}, {v(base)} offset:{sub*14336 + h*1792 + off}"
        L = [xr(0), wr(0, 0), wr(0, 1), xr(1), xr(2), xr(3)]
        for j in range(1, 7): L += [wr(j, 0), wr(j, 1)]
        return L

    def g1_mfmas(self, fs, first=False, cs=None):
        L = []
        for j in range(7):
            for mt in range(4):
                acc = v(ACC1 + (j*4+mt)*4, 4) if not self.o.get("acc_agpr") else a(128 + (j*4+mt)*4, 4)
                L.append(f"v_mfma_f32_16x16x32_bf16 {acc}, {v(FW[fs]+4*j,4)}, {v(FX[fs]+4*mt,4)}, {'0' if first else acc}")
            if cs is not None:
                ca = a(4*j, 4)
                L.append(f"v_mfma_f32_16x16x32_bf16 {ca}, {v(FW[fs]+4*j,4)}, {v(vONE,4)}, {'0' if cs == 0 else ca}")
        return L

    def g1_set_bases(self, sreg):
        return [f"v_add_u32 {v(vX0)}, s{sreg}, {v(vLX0)}", f"v_add_u32 {v(vWe)}, s{sreg}, {v(vLWe)}",
                f"v_add_u32 {v(vWo)}, s{sreg}, {v(vLWo)}", f"v_add_u32 {v(vW6)}, s{sreg}, {v(vLW6)}",
                f"v_add_u32 {v(vX1)}, s{sreg}, {v(vLX1)}"]

    def g1_lane_parts(self):
        T = vT
        self.A(f"""
        v_and_b32 {v(T)}, 15, v1
        v_lshrrev_b32 {v(T+1)}, 4, v1
        v_and_b32 {v(T+2)}, 7, {v(T)}
        v_xor_b32 {v(T+2)}, {v(T+2)}, {v(T+1)}
        s_lshl_b32 s{sT}, s{sMH}, 6
        v_add_u32 {v(T)}, s{sT}, {v(T)}
        v_lshlrev_b32 {v(T)}, 7, {v(T)}
        v_lshlrev_b32 {v(T+3)}, 4, {v(T+2)}
        v_add_u32 {v(vLX0)}, {v(T)}, {v(T+3)}
        v_xor_b32 {v(T+3)}, 64, {v(T+3)}
        v_add_u32 {v(vLX1)}, {v(T)}, {v(T+3)}
        v_lshrrev_b32 {v(T+2)}, 2, v1
        v_and_b32 {v(T+2)}, 3, {v(T+2)}
        v_lshl_add_u32 {v(T+2)}, {v(T+1)}, 3, {v(T+2)}
        v_mul_u32_u24 {v(T+2)}, 448, {v(T+2)}
        v_and_b32 {v(T+3)}, 3, v1
        v_lshl_add_u32 {v(T+2)}, {v(T+3)}, 3, {v(T+2)}
        v_and_b32 {v(T+1)}, 1, {v(T+1)}
        v_lshlrev_b32 {v(T+1)}, 5, {v(T+1)}
        v_add_u32 {v(T+3)}, {v(T+2)}, {v(T+1)}
        v_sub_u32 {v(T+4)}, {v(T+2)}, {v(T+1)}
        s_lshl_b32 s{sT}, s{sNH}, 8
        s_add_u32 s{sT}, s{sT}, {WREG}
        v_add_u32 {v(vLWe)}, s{sT}, {v(T+3)}
        v_add_u32 {v(vLWo)}, s{sT}, {v(T+4)}
        s_cmp_eq_u32 s{sNH}, 0
        s_cselect_b64 vcc, -1, 0
        s_mul_i32 s{sT}, s{sNH}, 32
        s_add_u32 s{sT}, s{sT}, {WREG + 192}
        v_cndmask_b32 {v(vLW6)}, {v(T+4)}, {v(T+3)}, vcc
        v_add_u32 {v(vLW6)}, s{sT}, {v(vLW6)}
        """)

    def prepass_loads(self):
        A = self.A
        T = vT
        A(f"""
        s_lshl_b32 s{sT}, s{sRB}, 7
        s_lshl_b32 s{sT+1}, s{sCB}, 3
        s_add_u32 s{sT}, s{sT}, s{sT+1}
        s_lshl_b32 s{sT+1}, s{sWV}, 1
        s_add_u32 s{sU}, s{sT}, s{sT+1}
        s_lshl_b32 s{sT}, s{sU}, 11
        v_lshlrev_b32 {v(T)}, 4, v1
        buffer_load_dwordx4 v[32:35], {v(T)}, {srd(S_X)}, s{sT} offen
        buffer_load_dwordx4 v[36:39], {v(T)}, {srd(S_X)}, s{sT} offen offset:1024
        buffer_load_dwordx4 v[40:43], {v(T)}, {srd(S_X)}, s{sT} offen offset:2048
        buffer_load_dwordx4 v[44:47], {v(T)}, {srd(S_X)}, s{sT} offen offset:3072
        """)
        nt = " nt" if self.o.get("nt_kv") else ""
        A(f"""
        v_and_b32 {v(T)}, 31, v1
        v_lshrrev_b32 {v(T+1)}, 5, v1
        s_lshl_b32 s{sT}, s{sCB}, 5
        v_add_u32 {v(T+2)}, s{sT}, {v(T)}
        v_lshlrev_b32 {v(T+3)}, 4, {v(T+2)}
        buffer_load_dwordx4 v[48:51], {v(T+3)}, {srd(S_SH)}, 0 offen
        s_lshl_b32 s{sT}, s{sRB}, 7
        s_lshl_b32 s{sT+1}, s{sWV}, 5
        s_add_u32 s{sT}, s{sT}, s{sT+1}
        v_lshl_add_u32 {v(T+1)}, {v(T+1)}, 4, s{sT}
        v_lshlrev_b32 {v(T+3)}, 11, {v(T+1)}
        v_lshl_add_u32 {v(T+3)}, {v(T+2)}, 2, {v(T+3)}
        v_subrev_u32 {v(T+4)}, {3*2048}, {v(T+3)}
        v_cmp_eq_u32 vcc, 0, {v(T+1)}
        v_mov_b32 {v(T+5)}, 0x80000000
        s_mov_b32 s{sT}, 4096
        v_cndmask_b32 {v(T+4)}, {v(T+4)}, {v(T+5)}, vcc
        buffer_load_dword v52, {v(T+4)}, {srd(S_K)}, 0 offen{nt}
        buffer_load_dword v53, {v(T+4)}, {srd(S_K)}, 0 offen offset:2048{nt}
        buffer_load_dword v54, {v(T+4)}, {srd(S_K)}, s{sT} offen{nt}
        """)
        for j in range(8):
            A(f"s_mov_b32 s{sT}, {j*4096}")
            A(f"buffer_load_dword v{55+2*j}, {v(T+3)}, {srd(S_K)}, s{sT} offen{nt}")
            A(f"buffer_load_dword v{56+2*j}, {v(T+3)}, {srd(S_K)}, s{sT} offen offset:2048{nt}")
        for j in range(8):
            A(f"s_mov_b32 s{sT}, {j*4096}")
            A(f"buffer_load_dword v{72+2*j}, {v(T+3)}, {srd(S_V)}, s{sT} offen{nt}")
            A(f"buffer_load_dword v{73+2*j}, {v(T+3)}, {srd(S_V)}, s{sT} offen offset:2048{nt}")

    def wave_sum2(self, ra, rb_):
        A = self.A
        for sh in ["row_shr:1", "row_shr:2", "row_shr:4", "row_shr:8"]:
            A(f"s_nop 0\nv_add_f32_dpp {v(ra)}, {v(ra)}, {v(ra)} {sh} row_mask:0xf bank_mask:0xf bound_ctrl:1")
            A(f"v_add_f32_dpp {v(rb_)}, {v(rb_)}, {v(rb_)} {sh} row_mask:0xf bank_mask:0xf bound_ctrl:1")
        A(f"s_nop 0\nv_add_f32_dpp {v(ra)}, {v(ra)}, {v(ra)} row_bcast:15 row_mask:0xa bank_mask:0xf")
        A(f"v_add_f32_dpp {v(rb_)}, {v(rb_)}, {v(rb_)} row_bcast:15 row_mask:0xa bank_mask:0xf")
        A(f"s_nop 0\nv_add_f32_dpp {v(ra)}, {v(ra)}, {v(ra)} row_bcast:31 row_mask:0xc bank_mask:0xf")
        A(f"v_add_f32_dpp {v(rb_)}, {v(rb_)}, {v(rb_)} row_bcast:31 row_mask:0xc bank_mask:0xf")

    def prepass_stats(self):
        A = self.A
        A("s_waitcnt vmcnt(36)")
        for r in range(2):
            for i in range(8):
                A(f"v_lshlrev_b32 v{128+16*r+2*i}, 16, v{32+8*r+i}")
                A(f"v_and_b32 v{129+16*r+2*i}, 0xffff0000, v{32+8*r+i}")
        for r in range(2):
            b = 128 + 16*r
            A(f"v_pk_add_f32 v[{160+2*r}:{161+2*r}], v[{b}:{b+1}], v[{b+2}:{b+3}]")
            for i in range(2, 8):
                A(f"v_pk_add_f32 v[{160+2*r}:{161+2*r}], v[{160+2*r}:{161+2*r}], v[{b+2*i}:{b+2*i+1}]")
        A("v_add_f32 v160, v160, v161\nv_add_f32 v162, v162, v163")
        self.wave_sum2(160, 162)
        A(f"""
        s_nop 0
        v_readlane_b32 s{sT}, v160, 63
        v_readlane_b32 s{sT+1}, v162, 63
        v_mov_b32 v164, 0x3a800000
        s_nop 0
        v_mul_f32 v166, s{sT}, v164
        v_mul_f32 v168, s{sT+1}, v164
        """)
        for r in range(2):
            b = 128 + 16*r
            m = 166 + 2*r
            for i in range(8):
                A(f"v_pk_add_f32 v[{b+2*i}:{b+2*i+1}], v[{b+2*i}:{b+2*i+1}], v[{m}:{m+1}] op_sel_hi:[1,0] neg_lo:[0,1] neg_hi:[0,1]")
        for r in range(2):
            b = 128 + 16*r
            A(f"v_pk_mul_f32 v[{160+2*r}:{161+2*r}], v[{b}:{b+1}], v[{b}:{b+1}]")
            for i in range(1, 8):
                A(f"v_pk_fma_f32 v[{160+2*r}:{161+2*r}], v[{b+2*i}:{b+2*i+1}], v[{b+2*i}:{b+2*i+1}], v[{160+2*r}:{161+2*r}]")
        A("v_add_f32 v160, v160, v161\nv_add_f32 v162, v162, v163")
        self.wave_sum2(160, 162)
        A(f"""
        s_nop 0
        v_readlane_b32 s{sT}, v160, 63
        v_readlane_b32 s{sT+1}, v162, 63
        v_and_b32 v170, 1, v1
        v_cmp_eq_u32 vcc, 1, v170
        v_mov_b32 v171, s{sT}
        v_mov_b32 v172, s{sT+1}
        v_cndmask_b32 v171, v171, v172, vcc
        v_cndmask_b32 v176, v166, v168, vcc
        v_mul_f32 v171, v171, v164
        v_mov_b32 v173, 0x3727c5ac
        v_add_f32 v174, v171, v173
        v_rsq_f32 v177, v174
        s_nop 0
        v_mul_f32 v174, v177, v177
        v_fma_f32 v174, v171, v174, v173
        v_rsq_f32 v174, v174
        s_nop 0
        v_mul_f32 v178, v177, v174
        v_mul_f32 v179, v178, v176
        s_lshl_b32 s{sT}, s{sU}, 4
        s_add_u32 s{sT}, s{sT}, {WS_STATS}
        v_lshlrev_b32 v175, 4, v1
        s_mov_b64 exec, 3
        buffer_store_dwordx4 v[176:179], v175, {srd(S_WS)}, s{sT} offen sc1
        s_mov_b64 exec, -1
        """)

    def prepass_up(self):
        A = self.A
        T = vT
        A("s_waitcnt vmcnt(1)")
        A("""
        v_lshlrev_b32 v128, 16, v48
        v_lshlrev_b32 v129, 16, v50
        v_and_b32 v130, 0xffff0000, v48
        v_and_b32 v131, 0xffff0000, v50
        v_lshlrev_b32 v132, 16, v49
        v_lshlrev_b32 v133, 16, v51
        v_and_b32 v134, 0xffff0000, v49
        v_and_b32 v135, 0xffff0000, v51
        """)
        for i in range(19):
            A(f"v_lshlrev_b32 v{136+2*i}, 16, v{52+i}\nv_and_b32 v{137+2*i}, 0xffff0000, v{52+i}")
        for t in range(16):
            A(f"v_lshlrev_b32 v{174+2*t}, 16, v{72+t}\nv_and_b32 v{175+2*t}, 0xffff0000, v{72+t}")
        def kp(t): return f"v[{136+2*(t+3)}:{137+2*(t+3)}]"
        def W(j): return f"v[{128+2*j}:{129+2*j}]"
        for j in range(4):
            for t in range(16):
                u = f"v[{206+2*t}:{207+2*t}]"
                if j == 0: A(f"v_pk_mul_f32 {u}, {kp(t)}, {W(0)}")
                else: A(f"v_pk_fma_f32 {u}, {kp(t-j)}, {W(j)}, {u}")
        for t in range(16):
            u = f"v[{206+2*t}:{207+2*t}]"
            A(f"v_pk_mul_f32 {u}, {u}, v[{174+2*t}:{175+2*t}]")
        for c in range(2):
            for rho in range(4):
                d = 32 + (c*4+rho)*2
                A(f"v_cvt_pk_bf16_f32 v{d}, v{206+2*rho+c}, v{206+2*(rho+4)+c}")
                A(f"v_cvt_pk_bf16_f32 v{d+1}, v{206+2*(rho+8)+c}, v{206+2*(rho+12)+c}")
        A(f"""
        v_and_b32 {v(T)}, 31, v1
        v_lshrrev_b32 {v(T+1)}, 5, v1
        v_and_b32 {v(T+2)}, 15, v1
        v_lshlrev_b32 {v(T+3)}, 9, {v(T)}
        v_lshl_add_u32 {v(T+3)}, {v(T+1)}, 3, {v(T+3)}
        v_add_u32 {v(T+3)}, {L_F}, {v(T+3)}
        """)
        for rho in range(4):
            A(f"""
            s_add_u32 s{sT}, s{sWV}, {4*rho}
            v_xor_b32 {v(T+4)}, s{sT}, {v(T+2)}
            v_lshl_add_u32 {v(T+4)}, {v(T+4)}, 4, {v(T+3)}
            ds_write_b64 {v(T+4)}, v[{32+rho*2}:{33+rho*2}]
            ds_write_b64 {v(T+4)}, v[{32+(4+rho)*2}:{33+(4+rho)*2}] offset:256
            """)
        A("s_waitcnt lgkmcnt(0)\ns_barrier")
        A(f"""
        v_lshrrev_b32 {v(T)}, 4, v1
        s_lshl_b32 s{sT}, s{sWV}, 4
        v_add_u32 {v(T)}, s{sT}, {v(T)}
        v_and_b32 {v(T+1)}, 15, v1
        """)
        for j in range(4):
            A(f"""
            v_add_u32 {v(T+2)}, {4*j}, {v(T)}
            v_lshrrev_b32 {v(T+3)}, 1, {v(T+2)}
            v_and_b32 {v(T+3)}, 15, {v(T+3)}
            v_xor_b32 {v(T+3)}, {v(T+3)}, {v(T+1)}
            v_lshlrev_b32 {v(T+3)}, 4, {v(T+3)}
            v_lshl_add_u32 {v(T+3)}, {v(T+2)}, 8, {v(T+3)}
            v_add_u32 {v(T+3)}, {L_F}, {v(T+3)}
            ds_read_b128 v[{48+4*j}:{51+4*j}], {v(T+3)}
            v_lshlrev_b32 {v(T+2)}, 12, {v(T+2)}
            v_lshl_add_u32 v{64+j}, {v(T+1)}, 4, {v(T+2)}
            """)
        A(f"""
        s_lshl_b32 s{sT}, s{sCB}, 18
        s_lshl_b32 s{sT+1}, s{sRB}, 8
        s_add_u32 s{sT}, s{sT}, s{sT+1}
        s_add_u32 s{sT}, s{sT}, {WS_UP}
        s_waitcnt lgkmcnt(0)
        """)
        for j in range(4):
            A(f"buffer_store_dwordx4 v[{48+4*j}:{51+4*j}], v{64+j}, {srd(S_WS)}, s{sT} offen sc1")

    def gemm1(self):
        A, o = self.A, self.o
        nb = 6
        A(f"s_lshl_b32 s{sOffX}, s{sRB}, 7\ns_mul_i32 s{sOffW}, s{sRB}, {64*7168}\ns_mov_b32 s{sKold}, 0\ns_mov_b32 s{sDma}, 0")
        for st in range(2):
            self.g1_emit_dmas(self.g1_dma(sDma))
            for x in self.g1_next_off(): A(x)
            A(f"s_add_u32 s{sDma}, s{sDma}, {STAGE}")
        self.g1_emit_dmas(self.g1_dma(sDma)[:nb])
        self.stamp(1)
        self.nonce_publish()
        self.prepass_loads()
        self.g1_lane_parts()
        for i in range(4): A(f"v_mov_b32 {v(vONE+i)}, 0x3f803f80")
        self.prepass_stats()
        self.stamp(2)
        self.prepass_up()
        self.stamp(3)
        A("s_barrier")
        A(f"s_mov_b32 s{sCur}, 0\ns_mov_b32 s{sNxt}, {STAGE}")
        for x in self.g1_set_bases(sCur): A(x)
        for x in self.g1_reads(0, 0): A(x)
        A("s_waitcnt lgkmcnt(0)")

        rposA = [0,1,3,4,5,6,8,9,10,11,13,14,15,16,18,19,20,21]
        rposB = [1,1,3,4,5,6,8,9,10,11,13,14,15,16,18,19,20,21]
        dposA = [2,7,12,17,22]
        dposB = [2,7,12,17,22,26]

        def dma_items(dm, pos, first_pre):
            it = []
            for i, g in enumerate(dm):
                p = pos[i]
                pre = g[:-1]
                if i == 0 and not pre and first_pre: pre = first_pre
                if pre: it.append((p - 1, pre))
                it.append((p, g[-1:]))
            return it

        def stretch(pos, n, cs):
            return [ (p * 35) // 28 for p in pos ] if cs is not None else pos

        def body(k, loop=None):
            dmaA = (k is None) or k <= 13
            dmaB = (k is None) or k <= 12
            last = (k == 15)
            csA = 0 if k == 0 else None
            csB = 1 if k == 0 else None
            m = self.g1_mfmas(0, first=(k == 0), cs=csA)
            items = []
            for p, r in zip(stretch(rposA, 18, csA), self.g1_reads(1, 1)): items.append((p, r))
            if dmaA:
                dp = stretch(dposA, 5, csA)
                items += dma_items(self.g1_dma(sDma)[nb:], dp, self.g1_m0(nb, sDma))
                no = self.g1_next_off()
                p0 = dp[-1] + 1
                for i, x in enumerate(no): items.append((p0 + (i+1)//2, x))
                items.append((len(m) - 1, f"s_mov_b32 s{sDma}, s{sCur}"))
            for x in sched(m, items): A(x)
            extraA = 0
            if k == 1:
                A(f"""
                v_lshrrev_b32 {v(vT)}, 4, v1
                v_lshlrev_b32 {v(vT)}, 4, {v(vT)}
                s_lshl_b32 s{sT}, s{sCB}, 4
                s_add_u32 s{sT}, s{sT}, s{sRB}
                s_mul_i32 s{sT}, s{sT}, 896
                s_add_u32 s{sT}, s{sT}, {WS_CS}
                s_lshl_b32 s{sT+1}, s{sNH}, 9
                s_add_u32 s{sT+1}, s{sT+1}, s{sT}
                s_lshl_b32 s{sT+2}, s{sNH}, 6
                s_add_u32 s{sT+2}, s{sT+2}, s{sT}
                s_mov_b32 exec_lo, 0x00010001\n                s_mov_b32 exec_hi, 0x00010001
                """)
                for j in range(6):
                    A(f"buffer_store_dwordx4 {a(4*j,4)}, {v(vT)}, {srd(S_WS)}, s{sT+1} offen offset:{j*64} sc1")
                A(f"buffer_store_dwordx4 {a(24,4)}, {v(vT)}, {srd(S_WS)}, s{sT+2} offen offset:384 sc1")
                A("s_mov_b64 exec, -1")
                extraA = 7
            if last:
                A("s_waitcnt lgkmcnt(0)")
                for x in self.g1_mfmas(1): A(x)
                return
            nwait = (11 + extraA) if dmaA else 0
            A(f"s_waitcnt vmcnt({nwait}) lgkmcnt(0)\ns_barrier")
            if k == 2:
                self.g1_publish_prepass()
                self.conv_filter_dma()
            if k == 14:
                self.g1_epi_loads()
            m = self.g1_mfmas(1, cs=csB)
            items = []
            pre = self.g1_set_bases(sNxt)
            for p, x in zip([0, 0, 1, 1, 6], pre): items.append((p, x))
            rp = stretch(rposB, 18, csB)
            for p, r in zip(rp, self.g1_reads(0, 0)): items.append((max(p, 1), r))
            if k == 1:
                items.append((0, f"buffer_load_dwordx2 {v(vM,2)}, v23, {srd(S_DBG)}, 0 offen sc1"))
            if k == 13:
                items.append((0, f"buffer_load_dwordx2 {v(vM,2)}, {v(vM+2)}, {srd(S_WS)}, 0 offen sc1"))
            if dmaB:
                items += dma_items(self.g1_dma(sDma)[:nb], stretch(dposB, 6, csB), None)
            rot = [f"s_mov_b32 s{sCur}, s{sNxt}", f"s_add_u32 s{sNxt}, s{sNxt}, {STAGE}",
                   f"s_cmp_eq_u32 s{sNxt}, {3*STAGE}", f"s_cselect_b32 s{sNxt}, 0, s{sNxt}"]
            e = len(m) - 1
            items.append((e-5, rot[0])); items.append((e-4, rot[1])); items.append((e-3, rot[2:4]))
            if loop:
                items.append((e-2, f"s_add_u32 s{sCnt}, s{sCnt}, 1")); items.append((e-1, f"s_cmp_lt_u32 s{sCnt}, 10"))
            for x in sched(m, items): A(x)
            A("s_waitcnt lgkmcnt(0)")
            if loop: A(f"s_cbranch_scc1 {loop}")

        A("v_mov_b32 v23, 0")
        body(0)
        if self.o.get("stamp_in"): self.stamp(8)
        body(1)
        body(2)
        if self.o.get("stamp_in"): self.stamp(9)
        A(f"""
        v_and_b32 {v(vT)}, 15, v1
        v_lshlrev_b32 {v(vT)}, 3, {v(vT)}
        s_lshl_b32 s{sT}, s{sRB}, 7
        s_add_u32 s{sT}, s{sT}, {F_RB}
        s_lshl_b32 s{sT+1}, s{sCB}, 7
        s_add_u32 s{sT+1}, s{sT+1}, {F_CB}
        v_mov_b32 {v(vT+1)}, s{sT}
        v_mov_b32 {v(vT+2)}, s{sT+1}
        v_cmp_gt_u32 vcc, 16, v1
        s_nop 1
        v_cndmask_b32 {v(vT+1)}, {v(vT+2)}, {v(vT+1)}, vcc
        v_add_u32 {v(vM+2)}, {v(vT)}, {v(vT+1)}
        s_mov_b32 s{sCnt}, 0
        """)
        A("L_g1loop:")
        body(None, loop="L_g1loop")
        if self.o.get("stamp_in"): self.stamp(10)
        body(13); body(14)
        if self.o.get("stamp_in"): self.stamp(11)
        body(15)

    def g1_publish_prepass(self):
        A = self.A
        A(f"""
        v_readfirstlane_b32 s{sNON}, {v(vM)}
        v_readfirstlane_b32 s{sNON+1}, {v(vM+1)}
        s_mov_b32 s{sT+6}, 0
        s_nop 2
        s_cmp_lg_u32 s{sNON}, 0
        s_cbranch_scc1 L_have_nonce
        L_nonce_spin:
        buffer_load_dwordx2 {v(vM,2)}, v23, {srd(S_DBG)}, 0 offen sc1
        s_waitcnt vmcnt(0)
        v_readfirstlane_b32 s{sNON}, {v(vM)}
        v_readfirstlane_b32 s{sNON+1}, {v(vM+1)}
        s_add_u32 s{sT+6}, s{sT+6}, 1
        s_cmp_gt_u32 s{sT+6}, 0x20000
        s_cbranch_scc1 L_have_nonce
        s_cmp_eq_u32 s{sNON}, 0
        s_cbranch_scc1 L_nonce_spin
        L_have_nonce:
        s_cmp_lg_u32 s{sWV}, 0
        s_cbranch_scc1 L_nopub1
        s_lshl_b32 s{sT}, s{sRB}, 7
        s_lshl_b32 s{sT+1}, s{sCB}, 3
        s_add_u32 s{sT}, s{sT}, s{sT+1}
        s_add_u32 s{sT}, s{sT}, {F_RB}
        s_lshl_b32 s{sT+1}, s{sCB}, 7
        s_lshl_b32 s{sT+2}, s{sRB}, 3
        s_add_u32 s{sT+1}, s{sT+1}, s{sT+2}
        s_add_u32 s{sT+1}, s{sT+1}, {F_CB}
        v_mov_b32 {v(vT)}, s{sT}
        v_mov_b32 {v(vT+1)}, s{sT+1}
        v_cmp_eq_u32 vcc, 0, v1
        s_nop 1
        v_cndmask_b32 {v(vT)}, {v(vT+1)}, {v(vT)}, vcc
        """)
        self.put_flags(vT, 2, vT+2)
        A("L_nopub1:")

    def conv_filter_dma(self):
        self.A(f"""
        s_lshl_b32 s{sU+4}, s{sCB}, 6
        s_lshl_b32 s{sT}, s{sRB}, 2
        s_add_u32 s{sU+4}, s{sU+4}, s{sT}
        s_add_u32 s{sU+4}, s{sU+4}, s{sWV}
        s_lshl_b32 s{sT}, s{sU+4}, 12
        s_mul_i32 s{sT+1}, s{sWV}, {F_CH}
        s_add_u32 m0, s{sT+1}, {L_F+64}
        v_lshlrev_b32 {v(vM+4)}, 4, v1
        buffer_load_dwordx4 {v(vM+4)}, {srd(S_SK)}, s{sT} offen lds
        buffer_load_dwordx4 {v(vM+4)}, {srd(S_SK)}, s{sT} offen offset:1024 lds
        buffer_load_dwordx4 {v(vM+4)}, {srd(S_SK)}, s{sT} offen offset:2048 lds
        buffer_load_dwordx4 {v(vM+4)}, {srd(S_SK)}, s{sT} offen offset:3072 lds
        """)

    def g1_epi_loads(self):
        A = self.A
        self.poll(32, vM+2, vM, "L_poll1", loaded=True)
        T = vT
        A(f"""
        v_and_b32 {v(T)}, 15, v1
        s_lshl_b32 s{sT}, s{sRB}, 7
        s_lshl_b32 s{sT+1}, s{sMH}, 6
        s_add_u32 s{sT}, s{sT}, s{sT+1}
        v_add_u32 {v(T)}, s{sT}, {v(T)}
        v_lshlrev_b32 {v(T)}, 4, {v(T)}
        s_mov_b32 s{sT}, {WS_STATS + 8}
        """)
        for mt in range(4):
            A(f"buffer_load_dwordx2 {v(vM+4+2*mt,2)}, {v(T)}, {srd(S_WS)}, s{sT} offen offset:{mt*256} sc1")
        A(f"""
        v_lshlrev_b32 {v(T+1)}, 2, v0
        s_mul_i32 s{sT}, s{sCB}, {16*896}
        s_add_u32 s{sT}, s{sT}, {WS_CS}
        """)
        for i in range(16):
            A(f"buffer_load_dword a{32+i}, {v(T+1)}, {srd(S_WS)}, s{sT} offen offset:{(i%4)*896} sc1")
            if i % 4 == 3: A(f"s_add_u32 s{sT}, s{sT}, {4*896}")
        A(f"""
        v_lshlrev_b32 {v(T+2)}, 1, v0
        s_mul_i32 s{sT}, s{sCB}, 448
        buffer_load_ushort a48, {v(T+2)}, {srd(S_B1)}, s{sT} offen
        """)

    def gelu(self):
        A, o = self.A, self.o
        T = vT
        A("s_waitcnt vmcnt(0)")
        A(f"v_accvgpr_read_b32 {v(T)}, a32")
        for i in range(1, 16):
            A(f"v_accvgpr_read_b32 {v(T+1+(i&1))}, a{32+i}\nv_add_f32 {v(T)}, {v(T)}, {v(T+1+(i&1))}")
        A(f"""
        v_accvgpr_read_b32 {v(T+3)}, a48
        v_lshlrev_b32 {v(T+4)}, 2, v0
        v_add_u32 {v(T+4)}, {L_CS}, {v(T+4)}
        v_lshlrev_b32 {v(T+3)}, 16, {v(T+3)}
        v_cmp_gt_u32 vcc, 224, v0
        s_and_saveexec_b64 s[{sEX}:{sEX+1}], vcc
        ds_write_b32 {v(T+4)}, {v(T)}
        ds_write_b32 {v(T+4)}, {v(T+3)} offset:896
        s_mov_b64 exec, s[{sEX}:{sEX+1}]
        s_waitcnt lgkmcnt(0)
        s_barrier
        """)
        self.stamp(5)
        self.conv_issue_u()
        if o.get("pf_w2", 1): self.prefetch_w2()
        A(f"""
        v_lshrrev_b32 {v(T)}, 4, v1
        v_lshlrev_b32 {v(T)}, 4, {v(T)}
        s_lshl_b32 s{sT}, s{sNH}, 9
        s_add_u32 s{sT}, s{sT}, {L_CS}
        v_add_u32 {v(T+1)}, s{sT}, {v(T)}
        s_lshl_b32 s{sT}, s{sNH}, 6
        s_add_u32 s{sT}, s{sT}, {L_CS + 384}
        v_add_u32 {v(T+2)}, s{sT}, {v(T)}
        """)
        for j in range(6):
            A(f"ds_read_b128 {v(32+4*j,4)}, {v(T+1)} offset:{j*64}")
            A(f"ds_read_b128 {v(60+4*j,4)}, {v(T+1)} offset:{896+j*64}")
        A(f"ds_read_b128 {v(56,4)}, {v(T+2)}\nds_read_b128 {v(84,4)}, {v(T+2)} offset:896")
        c0 = -2.0 * 0.7978845608028654 * 1.4426950408889634
        c1 = c0 * 0.044715
        import struct
        f2u = lambda x: struct.unpack("<I", struct.pack("<f", x))[0]
        A(f"""
        s_mov_b32 s{sC1}, {hex(f2u(c1))}
        s_mov_b32 s{sC1+1}, {hex(f2u(c1))}
        s_mov_b32 s{sC0}, 1.0
        s_mov_b32 s{sC0+1}, 1.0
        v_mov_b32 v88, {hex(f2u(c0))}
        v_mov_b32 v89, {hex(f2u(c0))}
        v_lshlrev_b32 v90, 4, v1
        s_lshl_b32 s{sT}, s{sMH}, 12
        v_add_u32 v90, s{sT}, v90
        v_lshlrev_b32 v91, 3, v1
        s_lshl_b32 s{sT+1}, s{sNH}, 9
        s_add_u32 s{sT}, s{sT}, s{sT+1}
        v_add_u32 v91, s{sT}, v91
        s_lshl_b32 s{sT}, s{sRB}, 4
        s_add_u32 s{sT}, s{sT}, s{sCB}
        s_mul_i32 s{sT}, s{sT}, 57344
        s_add_u32 s{sT}, s{sT}, {WS_H}
        s_add_u32 s{sU+3}, s{sT}, {3*8192}
        s_lshl_b32 s{sT+1}, s{sNH}, 15
        s_add_u32 s{sU}, s{sT}, s{sT+1}
        s_add_u32 s{sU+1}, s{sU}, 8192
        s_add_u32 s{sU+2}, s{sU}, 16384
        s_waitcnt lgkmcnt(0)
        """)
        X0, U0, O0 = 96, 104, 112
        cnt = 0
        def group(tiles, mt, store):
            nonlocal cnt
            npair = 2 * len(tiles)
            pairs = []
            for j in tiles:
                for hp in range(2):
                    pairs.append((ACC1 + (j*4+mt)*4 + 2*hp, 32 + 4*j + 2*hp, 60 + 4*j + 2*hp))
            r = vM + 4 + 2*mt
            rp = f"v[{r}:{r+1}]"
            out = O0 + 4*(cnt & 1); cnt += 1
            x = lambda p: f"v[{X0+2*p}:{X0+2*p+1}]"
            u = lambda p: f"v[{U0+2*p}:{U0+2*p+1}]"
            for p, (ac, cs, b1) in enumerate(pairs):
                A(f"v_pk_fma_f32 {u(p)}, v[{cs}:{cs+1}], {rp}, v[{b1}:{b1+1}] op_sel:[0,1,0] op_sel_hi:[1,1,1] neg_lo:[0,1,0] neg_hi:[0,1,0]")
            for p, (ac, cs, b1) in enumerate(pairs):
                A(f"v_pk_fma_f32 {x(p)}, v[{ac}:{ac+1}], {rp}, {u(p)} op_sel_hi:[1,0,1]")
            for p in range(npair): A(f"v_pk_mul_f32 {u(p)}, {x(p)}, {x(p)}")
            for p in range(npair): A(f"v_pk_fma_f32 {u(p)}, {u(p)}, s[{sC1}:{sC1+1}], v[88:89]")
            for p in range(npair): A(f"v_pk_mul_f32 {u(p)}, {x(p)}, {u(p)}")
            for p in range(npair):
                A(f"v_exp_f32 v{U0+2*p}, v{U0+2*p}\nv_exp_f32 v{U0+2*p+1}, v{U0+2*p+1}")
            if npair == 2: A("s_nop 0")
            for p in range(npair): A(f"v_pk_add_f32 {u(p)}, {u(p)}, s[{sC0}:{sC0+1}]")
            for p in range(npair):
                A(f"v_rcp_f32 v{U0+2*p}, v{U0+2*p}\nv_rcp_f32 v{U0+2*p+1}, v{U0+2*p+1}")
            if npair == 2: A("s_nop 0")
            for p in range(npair): A(f"v_pk_mul_f32 {x(p)}, {x(p)}, {u(p)}")
            for p in range(npair): A(f"v_cvt_pk_bf16_f32 v{out+p}, v{X0+2*p}, v{X0+2*p+1}")
            store(out)
        A("s_nop 7")
        for P in range(3):
            for mt in range(4):
                group([2*P, 2*P+1], mt, lambda out, P=P, mt=mt:
                      A(f"buffer_store_dwordx4 {v(out,4)}, v90, {srd(S_WS)}, s{sU+P} offen offset:{mt*1024} sc1"))
        for mt in range(4):
            group([6], mt, lambda out, mt=mt:
                  A(f"buffer_store_dwordx2 {v(out,2)}, v91, {srd(S_WS)}, s{sU+3} offen offset:{mt*1024} sc1"))

    def conv_issue_u(self):
        A = self.A
        T = vT
        d = sU + 4
        A(f"""
        v_lshrrev_b32 {v(T)}, 2, v1
        v_lshlrev_b32 {v(T)}, 8, {v(T)}
        v_and_b32 {v(T+1)}, 3, v1
        v_lshl_add_u32 {v(T)}, {v(T+1)}, 4, {v(T)}
        s_lshl_b32 s{sT}, s{d}, 12
        s_add_u32 s{sT}, s{sT}, {WS_UP}
        s_mul_i32 s{sT+1}, s{sWV}, {U_CH}
        s_add_u32 s{sT+1}, s{sT+1}, {L_U + 112}
        """)
        for rho in range(4):
            A(f"""
            s_add_u32 m0, s{sT+1}, {rho*U_PS}
            s_add_u32 s{sT+2}, s{sT}, {rho*64}
            buffer_load_dwordx4 {v(T)}, {srd(S_WS)}, s{sT+2} offen sc1 lds
            """)
        A(f"""
        v_mul_u32_u24 {v(T)}, 37, v1
        v_lshrrev_b32 {v(T)}, 8, {v(T)}
        v_mul_u32_u24 {v(T+1)}, 7, {v(T)}
        v_sub_u32 {v(T+1)}, v1, {v(T+1)}
        v_mul_u32_u24 {v(T)}, {U_PS}, {v(T)}
        v_lshl_add_u32 {v(T)}, {v(T+1)}, 4, {v(T)}
        s_mul_i32 s{sT}, s{sWV}, {U_CH}
        s_add_u32 s{sT}, s{sT}, {L_U}
        v_add_u32 {v(T)}, s{sT}, {v(T)}
        s_mul_i32 s{sT}, s{sWV}, {F_CH}
        s_add_u32 s{sT}, s{sT}, {L_F - 28*16}
        v_lshl_add_u32 {v(T+1)}, v1, 4, s{sT}
        v_cmp_gt_u32 vcc, 28, v1
        v_mov_b32 {v(T+4)}, 0
        v_mov_b32 {v(T+5)}, 0
        v_cndmask_b32 {v(T)}, {v(T+1)}, {v(T)}, vcc
        v_mov_b32 {v(T+6)}, 0
        v_mov_b32 {v(T+7)}, 0
        s_mov_b32 exec_hi, 0
        ds_write_b128 {v(T)}, {v(T+4,4)}
        s_mov_b32 exec_hi, -1
        s_lshl_b32 s{sT}, s{d}, 1
        buffer_load_ushort v124, v23, {srd(S_D)}, s{sT} offen
        """)

    def prefetch_w2(self):
        A = self.A
        T = vT
        A(f"""
        s_and_b32 s{sT}, s{sRB}, 7
        s_and_b32 s{sT+1}, s{sCB}, 3
        s_lshl_b32 s{sT+1}, s{sT+1}, 3
        s_add_u32 s{sT}, s{sT}, s{sT+1}
        s_mul_i32 s{sT}, s{sT}, 56
        s_lshr_b32 s{sT+1}, s{sCB}, 3
        s_mul_i32 s{sT+1}, s{sT+1}, 1792
        s_add_u32 s{sT}, s{sT}, s{sT+1}
        s_lshl_b32 s{sT}, s{sT}, 11
        s_lshr_b32 s{sT+1}, s{sCB}, 2
        s_and_b32 s{sT+1}, s{sT+1}, 1
        s_lshl_b32 s{sT+1}, s{sT+1}, 10
        s_add_u32 s{sT}, s{sT}, s{sT+1}
        s_lshl_b32 s{sT+1}, s{sWV}, 7
        v_add_u32 {v(T)}, s{sT+1}, v1
        v_lshrrev_b32 {v(T+1)}, 3, {v(T)}
        v_and_b32 {v(T+2)}, 7, {v(T)}
        v_lshlrev_b32 {v(T+1)}, 11, {v(T+1)}
        v_lshl_add_u32 {v(T+1)}, {v(T+2)}, 7, {v(T+1)}
        v_mov_b32 {v(T+2)}, 0x80000000
        v_cmp_gt_u32 vcc, 448, {v(T)}
        v_add_u32 {v(T+3)}, 64, {v(T)}
        v_add_u32 {v(T+4)}, {8*2048}, {v(T+1)}
        v_cndmask_b32 {v(T+1)}, {v(T+2)}, {v(T+1)}, vcc
        v_cmp_gt_u32 vcc, 448, {v(T+3)}
        s_nop 1
        v_cndmask_b32 {v(T+4)}, {v(T+2)}, {v(T+4)}, vcc
        buffer_load_dword v125, {v(T+1)}, {srd(S_W2)}, s{sT} offen
        buffer_load_dword v125, {v(T+4)}, {srd(S_W2)}, s{sT} offen
        """)

    def conv(self):
        A, o = self.A, self.o
        T = vT
        A(f"""
        s_mul_i32 s{sT}, s{sWV}, {F_CH}
        s_add_u32 s{sT}, s{sT}, {L_F}
        v_mov_b32 {v(T)}, s{sT}
        ds_read_u16 {v(T+1)}, {v(T)} offset:64
        v_lshlrev_b32 v124, 16, v124
        v_lshrrev_b32 {v(T+2)}, 4, v1
        v_and_b32 {v(T+3)}, 1, {v(T+2)}
        v_lshlrev_b32 {v(T+3)}, 5, {v(T+3)}
        v_lshrrev_b32 {v(T+2)}, 1, {v(T+2)}
        v_lshlrev_b32 {v(T+2)}, 6, {v(T+2)}
        v_sub_u32 {v(T+3)}, {v(T+3)}, {v(T+2)}
        v_and_b32 {v(T+2)}, 3, v1
        v_lshl_add_u32 {v(T+3)}, {v(T+2)}, 3, {v(T+3)}
        v_lshrrev_b32 {v(T+2)}, 2, v1
        v_and_b32 {v(T+2)}, 3, {v(T+2)}
        v_lshlrev_b32 {v(T+2)}, 3, {v(T+2)}
        v_sub_u32 {v(T+3)}, {v(T+3)}, {v(T+2)}
        s_add_u32 s{sT}, s{sT}, 96
        v_add_u32 v120, s{sT}, {v(T+3)}
        s_waitcnt lgkmcnt(0)
        v_lshlrev_b32 {v(T+1)}, 16, {v(T+1)}
        v_add_f32 {v(T+1)}, {v(T+1)}, v124
        v_cvt_pk_bf16_f32 {v(T+1)}, {v(T+1)}, {v(T+1)}
        ds_write_b16 {v(T)}, {v(T+1)} offset:64
        v_and_b32 {v(T+2)}, 3, v1
        v_mul_u32_u24 {v(T+2)}, {U_PS}, {v(T+2)}
        v_and_b32 {v(T+3)}, 31, v1
        v_lshrrev_b32 {v(T+3)}, 2, {v(T+3)}
        v_lshrrev_b32 {v(T+4)}, 5, v1
        v_add_u32 {v(T+3)}, {v(T+3)}, {v(T+4)}
        v_lshl_add_u32 {v(T+2)}, {v(T+3)}, 4, {v(T+2)}
        s_mul_i32 s{sT}, s{sWV}, {U_CH}
        s_add_u32 s{sT}, s{sT}, {L_U}
        v_add_u32 v121, s{sT}, {v(T+2)}
        s_waitcnt lgkmcnt(0)
        """)
        for aa in range(32):
            A(f"ds_read_b64_tr_b16 {a(128+4*aa,2)}, v120 offset:{128*aa+32}")
            A(f"ds_read_b64_tr_b16 {a(128+4*aa+2,2)}, v120 offset:{128*aa}")
        NQ = 8
        def ub(b): return 32 + 4*(b % NQ)
        PF = 6
        for b in range(PF):
            A(f"ds_read_b128 {v(ub(b),4)}, v121 offset:{32*b}")
        A("s_waitcnt lgkmcnt(0)")
        for b in range(32):
            n0 = max(0, (b - 3 + 3) // 4)
            ms = []
            for n in range(n0, 8):
                aa = 4*n + 3 - b
                if aa < 0: continue
                acc = v(128 + 16*n, 16)
                ms.append(f"v_mfma_f32_32x32x16_bf16 {acc}, {v(ub(b),4)}, {a(128+4*aa,4)}, {'0' if b == 0 else acc}")
            pend = min(32, b + PF) - (b + 1)
            if b >= 1:
                A(f"s_waitcnt lgkmcnt({max(0, min(15, pend))})")
            A(ms[0])
            if b + PF < 32:
                A(f"ds_read_b128 {v(ub(b+PF),4)}, v121 offset:{32*(b+PF)}")
            for x in ms[1:]: A(x)
        Z = lambda t, e: 128 + 4*t + e
        def step(D, Wp, Zc):
            for t in range(32):
                if t == 0: A(f"v_mov_b32 v{D(0)}, v{Zc(0)}")
                else: A(f"v_add_f32_dpp v{D(t)}, v{Wp(t-1)}, v{Zc(t)} wave_ror:1 row_mask:0xf bank_mask:0xf")
                A(f"v_add_f32_dpp v{D(t)}, v{Wp(t)}, v{Zc(t)} wave_shr:1 row_mask:0xf bank_mask:0xf")
        A("s_nop 7\ns_nop 3")
        step(lambda t: 64+t, lambda t: Z(t, 3), lambda t: Z(t, 2))
        step(lambda t: Z(t, 3), lambda t: 64+t, lambda t: Z(t, 1))
        step(lambda t: 64+t, lambda t: Z(t, 3), lambda t: Z(t, 0))
        for t in range(0, 32, 2):
            A(f"v_cvt_pk_bf16_f32 v{32+t//2}, v{64+t}, v{64+t+1}")
        A(f"""
        v_lshlrev_b32 {v(T)}, 3, v1
        s_lshl_b32 s{sT}, s{sWV}, 1
        s_add_u32 s{sT}, s{sT}, {L_YT}
        v_add_u32 {v(T)}, s{sT}, {v(T)}
        s_barrier
        """)
        for t in range(0, 32, 2):
            A(f"ds_write_b16 {v(T)}, v{32+t//2} offset:{t*512}")
            A(f"ds_write_b16_d16_hi {v(T)}, v{32+t//2} offset:{(t+1)*512}")
        A(f"""
        v_lshlrev_b32 {v(T+1)}, 4, v1
        s_lshl_b32 s{sT}, s{sWV}, 12
        v_add_u32 {v(T+1)}, s{sT}, {v(T+1)}
        v_add_u32 {v(T+2)}, {L_YT}, {v(T+1)}
        s_lshl_b32 s{sT}, s{sCB}, 4
        s_add_u32 s{sT}, s{sT}, s{sRB}
        s_lshl_b32 s{sT}, s{sT}, 14
        s_add_u32 s{sT}, s{sT}, {WS_Y4}
        s_waitcnt lgkmcnt(0)
        s_barrier
        """)
        for j in range(4):
            A(f"ds_read_b128 {v(48+4*j,4)}, {v(T+2)} offset:{j*1024}")
        A("s_waitcnt lgkmcnt(0)")
        for j in range(4):
            A(f"buffer_store_dwordx4 {v(48+4*j,4)}, {v(T+1)}, {srd(S_WS)}, s{sT} offen offset:{j*1024} sc1")

    def publish(self, base, hi_sreg, lo_sreg, label):
        A = self.A
        A(f"""
        s_waitcnt vmcnt(0)
        s_barrier
        s_cmp_lg_u32 s{sWV}, 0
        s_cbranch_scc1 {label}
        s_lshl_b32 s{sT}, s{hi_sreg}, 7
        s_lshl_b32 s{sT+1}, s{lo_sreg}, 3
        s_add_u32 s{sT}, s{sT}, s{sT+1}
        s_add_u32 s{sT}, s{sT}, {base}
        v_mov_b32 {v(vT)}, s{sT}
        """)
        self.put_flags(vT, 1, vT+2)
        A(f"{label}:")

    def g2_setup(self):
        A = self.A
        T = vT
        sKH, sNB = sU+5, sU+6
        A(f"""
        s_lshr_b32 s{sKH}, s{sCB}, 3
        s_and_b32 s{sNB}, s{sCB}, 7
        s_mov_b32 s{S_K}, s{S_WS}
        s_mov_b32 s{S_K+1}, s{S_WS+1}
        s_mov_b32 s{S_K+2}, 0x10000000
        s_mov_b32 s{S_K+3}, 0x20000
        s_lshl_b32 s{sM0X}, s{sWV}, 11
        v_lshlrev_b32 {v(T)}, 4, v1
        v_add_u32 v110, s{sM0X}, {v(T)}
        s_lshl_b32 s{sT}, s{sMH}, 2
        s_lshl_b32 s{sT+1}, s{sKH}, 1
        s_add_u32 s{sT+2}, s{sT}, s{sT+1}
        s_lshl_b32 s{sT+2}, s{sT+2}, 10
        s_add_u32 s{sT+3}, s{sT}, 2
        s_sub_u32 s{sT+3}, s{sT+3}, s{sT+1}
        s_lshl_b32 s{sT+3}, s{sT+3}, 10
        v_add_u32 v96, s{sT+2}, {v(T)}
        v_add_u32 v97, 0x10000, v96
        v_add_u32 v98, s{sT+3}, {v(T)}
        v_add_u32 v99, 0x10000, v98
        v_lshlrev_b32 {v(T)}, 3, v1
        v_add_u32 v100, s{sT+2}, {v(T)}
        v_add_u32 v101, s{sT+3}, {v(T)}
        """)
        A(f"""
        v_lshrrev_b32 {v(T)}, 4, v1
        v_lshrrev_b32 {v(T+1)}, 2, v1
        v_and_b32 {v(T+1)}, 3, {v(T+1)}
        v_lshl_add_u32 {v(T+2)}, {v(T)}, 2, {v(T+1)}
        v_and_b32 {v(T+3)}, 7, {v(T+2)}
        v_lshlrev_b32 {v(T+2)}, 8, {v(T+2)}
        v_and_b32 {v(T+4)}, 3, v1
        v_lshl_add_u32 {v(T+2)}, {v(T+4)}, 3, {v(T+2)}
        v_add_u32 {v(T+2)}, 8192, {v(T+2)}
        s_lshl_b32 s{sT}, s{sNH}, 2
        """)
        for nt in range(4):
            A(f"""
            s_add_u32 s{sT+1}, s{sT}, {nt}
            v_xor_b32 {v(T+4)}, s{sT+1}, {v(T+3)}
            v_lshl_add_u32 v{102+nt}, {v(T+4)}, 5, {v(T+2)}
            v_add_u32 v{106+nt}, 0x10000, v{102+nt}
            """)
        A(f"""
        v_lshrrev_b32 {v(T)}, 4, v1
        v_and_b32 {v(T+1)}, 15, v1
        s_lshl_b32 s{sT}, s{sWV}, 3
        s_lshl_b32 s{sT+1}, s{sNB}, 8
        """)
        for j in range(2):
            A(f"""
            v_add_u32 {v(T+2)}, {4*j}, {v(T)}
            v_lshlrev_b32 {v(T+3)}, 1, {v(T+2)}
            v_xor_b32 {v(T+3)}, {v(T+3)}, {v(T+1)}
            v_add_u32 {v(T+2)}, s{sT}, {v(T+2)}
            v_lshlrev_b32 {v(T+2)}, 11, {v(T+2)}
            v_lshl_add_u32 {v(T+2)}, {v(T+3)}, 4, {v(T+2)}
            v_add_u32 {v(T+2)}, s{sT+1}, {v(T+2)}
            v_subrev_u32 v{111+j}, {j*1024}, {v(T+2)}
            """)
        A(f"""
        s_lshl_b32 s{sT}, s{sRB}, 4
        s_add_u32 s{sT}, s{sT}, s{sCB}
        s_mul_i32 s{sOffX}, s{sT}, 57344
        s_add_u32 s{sOffX}, s{sOffX}, {WS_H}
        s_mul_i32 s{sOffW}, s{sCB}, {224*2048}
        s_mov_b32 s{sKold}, 0
        """)

    def g2_dma(self, slot):
        sc = " sc1" if not self.o.get("h_plain") else ""
        return [[f"s_add_u32 m0, s{sM0X}, {slot*16384}", f"buffer_load_dwordx4 v110, {srd(S_K)}, s{sOffX} offen{sc} lds"],
                [f"buffer_load_dwordx4 v110, {srd(S_K)}, s{sOffX} offen offset:1024{sc} lds"],
                [f"s_add_u32 m0, s{sM0X}, {slot*16384+8192}", f"buffer_load_dwordx4 v111, {srd(S_W2)}, s{sOffW} offen lds"],
                [f"buffer_load_dwordx4 v112, {srd(S_W2)}, s{sOffW} offen offset:1024 lds"]]

    def g2_advance(self, u):
        sKH, sNB = sU+5, sU+6
        if u < 6:
            return [f"s_add_u32 s{sOffX}, s{sOffX}, 8192", f"s_add_u32 s{sOffW}, s{sOffW}, 65536"]
        return [f"s_cmp_ge_u32 s{sKold}, s{sNB}", f"s_addc_u32 s{sT}, s{sKold}, 0", f"s_lshl_b32 s{sT+1}, s{sKH}, 3",
                f"s_add_u32 s{sT}, s{sT}, s{sT+1}", f"s_mul_i32 s{sOffW}, s{sT}, {224*2048}",
                f"s_lshl_b32 s{sT+1}, s{sRB}, 4", f"s_add_u32 s{sT}, s{sT}, s{sT+1}", f"s_mul_i32 s{sOffX}, s{sT}, 57344",
                f"s_add_u32 s{sOffX}, s{sOffX}, {WS_H}", f"s_add_u32 s{sKold}, s{sKold}, 1",
                f"s_cmp_gt_u32 s{sKold}, 7", f"s_cselect_b32 s{S_K+2}, 0, s{S_K+2}", f"s_cselect_b32 s{S_W2+2}, 0, s{S_W2+2}"]

    def g2_prefill(self):
        A = self.A
        for u in range(6):
            for g in self.g2_dma(u):
                for x in g[:-1]: A(x + "\ns_nop 0")
                A(g[-1])
            for x in self.g2_advance(u): A(x)

    def g2_reads(self, slot, fs):
        FH = [32, 48]; FWt = [64, 80]
        hi = slot >= 4
        so = (slot - 4 if hi else slot) * 16384
        L = []
        def hr(m):
            keep = m < 2
            d = FH[fs] + 4*m
            if slot == 3:
                b = 100 if keep else 101
                return [f"ds_read_b64 {v(d,2)}, v{b} offset:{3*16384 + (m&1)*1024}",
                        f"ds_read_b64 {v(d+2,2)}, v{b} offset:{3*16384 + (m&1)*1024 + 512}"]
            b = (96 if keep else 98) + (1 if hi else 0)
            return [f"ds_read_b128 {v(d,4)}, v{b} offset:{so + (m&1)*1024}"]
        def wr(nt, h):
            b = (106 if hi else 102) + nt
            return f"ds_read_b64_tr_b16 {v(FWt[fs]+4*nt+2*h,2)}, v{b} offset:{so + h*4096}"
        L += hr(0) + [wr(0, 0), wr(0, 1)] + hr(1) + hr(2) + hr(3)
        for nt in range(1, 4): L += [wr(nt, 0), wr(nt, 1)]
        return L

    def g2_mfmas(self, fs):
        FH = [32, 48]; FWt = [64, 80]
        L = []
        for nt in range(4):
            for m in range(4):
                acc = v(128 + (nt*4+m)*4, 4)
                L.append(f"v_mfma_f32_16x16x32_bf16 {acc}, {v(FWt[fs]+4*nt,4)}, {v(FH[fs]+4*m,4)}, {acc}")
        return L

    def gemm2(self):
        A, o = self.A, self.o
        T = vT
        sKH, sNB = sU+5, sU+6
        A(f"""
        v_lshlrev_b32 {v(T)}, 3, v1
        s_lshl_b32 s{sT}, s{sRB}, 7
        s_lshl_b32 s{sT+1}, s{sKH}, 6
        s_add_u32 s{sT}, s{sT}, s{sT+1}
        s_add_u32 s{sT}, s{sT}, {F_H}
        v_add_u32 {v(T)}, s{sT}, {v(T)}
        """)
        self.poll(8, T, T+2, "L_pollH")
        for i in range(64): A(f"v_mov_b32 v{128+i}, 0")
        for x in self.g2_reads(0, 0): A(x)
        A(f"s_mov_b32 s{sCnt}, 0")
        A("L_g2loop:")
        for U in range(14):
            if U % 2 == 0: A("s_waitcnt vmcnt(12) lgkmcnt(0)\ns_barrier")
            else: A("s_waitcnt lgkmcnt(0)")
            m = self.g2_mfmas(U & 1)
            items = []
            rd = self.g2_reads((U+1) % 7, (U+1) & 1)
            free = [0, 2, 3, 4, 6, 7, 8, 10, 11, 11, 12, 12, 13, 13, 14, 14]
            if len(rd) == 12: free = [0, 1, 2, 3, 4, 6, 7, 8, 10, 11, 12, 13]
            else: free = [0, 0, 1, 2, 2, 3, 4, 4, 6, 6, 7, 8, 10, 11, 12, 13]
            for p, r in zip(free, rd): items.append((p, r))
            X = U + 6
            dm = self.g2_dma(X % 7)
            for p, g in zip([1, 5, 9, 13], dm):
                if len(g) > 1: items.append((p-1, g[:-1]))
                items.append((p, g[-1:]))
            adv = self.g2_advance(X % 7)
            if len(adv) == 2:
                items.append((14, adv))
            else:
                items.append((14, adv[:6])); items.append((15, adv[6:]))
            if U == 13:
                items.append((15, [f"s_add_u32 s{sCnt}, s{sCnt}, 1", f"s_cmp_lt_u32 s{sCnt}, 4"]))
            for x in sched(m, items): A(x)
        A("s_cbranch_scc1 L_g2loop")

    def g2_final(self):
        A, o = self.A, self.o
        T = vT
        sKH, sNB = sU+5, sU+6
        A(f"""
        s_xor_b32 s{sT}, s{sCB}, 8
        s_lshl_b32 s{sT+1}, s{sRB}, 4
        s_add_u32 s{sT}, s{sT}, s{sT+1}
        s_lshl_b32 s{sT}, s{sT}, 2
        s_add_u32 s{sT}, s{sT}, s{sWV}
        s_lshl_b32 s{sT}, s{sT}, 13
        s_add_u32 s{sT}, s{sT}, {WS_XCH}
        s_add_u32 s{sT+1}, s{sT}, 4096
        v_lshlrev_b32 v113, 4, v1
        s_waitcnt vmcnt(0)
        s_nop 4
        """)
        for nt in range(4):
            for j in range(2):
                q = nt*2 + j
                A(f"buffer_store_dwordx4 {v(128+(nt*4+2+j)*4,4)}, v113, {srd(S_WS)}, s{sT + (q//4)} offen offset:{(q%4)*1024} sc1")
        A(f"""
        v_and_b32 {v(T)}, 15, v1
        v_lshlrev_b32 {v(T+1)}, 3, v1
        s_lshl_b32 s{sT}, s{sNB}, 8
        s_add_u32 s{sT}, s{sT}, {F_Y}
        v_add_u32 v114, s{sT}, {v(T+1)}
        """)
        self.poll(32, 114, T+2, "L_pollY")
        A(f"""
        s_lshl_b32 s{sT}, s{sRB}, 7
        s_lshl_b32 s{sT+1}, s{sMH}, 6
        s_add_u32 s{sT}, s{sT}, s{sT+1}
        s_lshl_b32 s{sT+1}, s{sKH}, 5
        s_add_u32 s{sT}, s{sT}, s{sT+1}
        v_add_u32 {v(T)}, s{sT}, {v(T)}
        v_lshrrev_b32 {v(T+1)}, 4, v1
        s_lshl_b32 s{sT}, s{sNB}, 8
        s_lshl_b32 s{sT+1}, s{sNH}, 7
        s_add_u32 s{sT}, s{sT}, s{sT+1}
        v_lshlrev_b32 v115, 11, {v(T)}
        v_lshl_add_u32 v115, {v(T+1)}, 3, v115
        v_add_u32 v115, s{sT}, v115
        v_add_u32 v116, 32768, v115
        v_lshlrev_b32 v117, 3, {v(T)}
        v_lshl_add_u32 v117, {v(T+1)}, 14, v117
        v_lshlrev_b32 v118, 4, {v(T)}
        v_lshlrev_b32 v119, 3, {v(T+1)}
        v_add_u32 v119, s{sT}, v119
        s_lshl_b32 s{sT+2}, s{sNB}, 5
        s_lshl_b32 s{sT+3}, s{sNH}, 4
        s_add_u32 s{sT+2}, s{sT+2}, s{sT+3}
        s_lshl_b32 s{sT+2}, s{sT+2}, 14
        s_add_u32 s{sT+2}, s{sT+2}, {WS_Y4}
        s_mov_b32 s{sT+3}, {WS_STATS}
        """)
        for nt in range(4):
            for j in range(2):
                q = nt*2 + j
                A(f"buffer_load_dwordx2 {v(32+2*q,2)}, v{115+j}, {srd(S_X)}, 0 offen offset:{nt*32}")
        for nt in range(4):
            for j in range(2):
                q = nt*2 + j
                A(f"buffer_load_dwordx2 {v(48+2*q,2)}, v117, {srd(S_WS)}, s{sT+2} offen offset:{j*128} sc1")
            A(f"s_add_u32 s{sT+2}, s{sT+2}, {4*16384}")
        for j in range(2):
            A(f"buffer_load_dwordx2 {v(104+2*j,2)}, v118, {srd(S_WS)}, s{sT+3} offen offset:{j*256} sc1")
        for nt in range(4):
            A(f"buffer_load_dwordx2 {v(96+2*nt,2)}, v119, {srd(S_B2)}, 0 offen offset:{nt*32}")
        self.publish(F_X, sRB, sCB, "L_pubX")
        A(f"""
        s_xor_b32 s{sT}, s{sCB}, 8
        s_lshl_b32 s{sT}, s{sT}, 3
        s_lshl_b32 s{sT+1}, s{sRB}, 7
        s_add_u32 s{sT}, s{sT}, s{sT+1}
        s_add_u32 s{sT}, s{sT}, {F_X}
        v_mov_b32 v114, s{sT}
        """)
        self.poll(1, 114, T+2, "L_pollX")
        A(f"""
        s_lshl_b32 s{sT}, s{sRB}, 4
        s_add_u32 s{sT}, s{sT}, s{sCB}
        s_lshl_b32 s{sT}, s{sT}, 2
        s_add_u32 s{sT}, s{sT}, s{sWV}
        s_lshl_b32 s{sT}, s{sT}, 13
        s_add_u32 s{sT}, s{sT}, {WS_XCH}
        s_add_u32 s{sT+1}, s{sT}, 4096
        """)
        for q in range(8):
            A(f"buffer_load_dwordx4 {v(64+4*q,4)}, v113, {srd(S_WS)}, s{sT + (q//4)} offen offset:{(q%4)*1024} sc1")
        for nt in range(4):
            A(f"""
            v_lshlrev_b32 v{192+4*nt}, 16, v{96+2*nt}
            v_and_b32 v{193+4*nt}, 0xffff0000, v{96+2*nt}
            v_lshlrev_b32 v{194+4*nt}, 16, v{97+2*nt}
            v_and_b32 v{195+4*nt}, 0xffff0000, v{97+2*nt}
            """)
        for nt in range(4):
            for j in range(2):
                q = nt*2 + j
                xb, yb, ob = 32+2*q, 48+2*q, 208+4*q
                st = f"v[{104+2*j}:{105+2*j}]"
                A(f"""
                v_lshlrev_b32 v240, 16, v{xb}
                v_and_b32 v241, 0xffff0000, v{xb}
                v_lshlrev_b32 v242, 16, v{xb+1}
                v_and_b32 v243, 0xffff0000, v{xb+1}
                v_lshlrev_b32 v244, 16, v{yb}
                v_and_b32 v245, 0xffff0000, v{yb}
                v_lshlrev_b32 v246, 16, v{yb+1}
                v_and_b32 v247, 0xffff0000, v{yb+1}
                v_pk_add_f32 v[248:249], v[240:241], {st} op_sel_hi:[1,0] neg_lo:[0,1] neg_hi:[0,1]
                v_pk_add_f32 v[250:251], v[242:243], {st} op_sel_hi:[1,0] neg_lo:[0,1] neg_hi:[0,1]
                v_pk_mul_f32 v[248:249], v[248:249], {st} op_sel:[0,1] op_sel_hi:[1,1]
                v_pk_mul_f32 v[250:251], v[250:251], {st} op_sel:[0,1] op_sel_hi:[1,1]
                v_pk_fma_f32 v[{ob}:{ob+1}], v[248:249], v[244:245], v[240:241]
                v_pk_fma_f32 v[{ob+2}:{ob+3}], v[250:251], v[246:247], v[242:243]
                v_pk_add_f32 v[{ob}:{ob+1}], v[{ob}:{ob+1}], v[{192+4*nt}:{193+4*nt}]
                v_pk_add_f32 v[{ob+2}:{ob+3}], v[{ob+2}:{ob+3}], v[{194+4*nt}:{195+4*nt}]
                v_pk_add_f32 v[{ob}:{ob+1}], v[{ob}:{ob+1}], v[{128+(nt*4+j)*4}:{129+(nt*4+j)*4}]
                v_pk_add_f32 v[{ob+2}:{ob+3}], v[{ob+2}:{ob+3}], v[{130+(nt*4+j)*4}:{131+(nt*4+j)*4}]
                """)
        A("s_waitcnt vmcnt(0)")
        for q in range(8):
            nt, j = q // 2, q % 2
            ob, rb_ = 208+4*q, 64+4*q
            A(f"""
            v_pk_add_f32 v[{ob}:{ob+1}], v[{ob}:{ob+1}], v[{rb_}:{rb_+1}]
            v_pk_add_f32 v[{ob+2}:{ob+3}], v[{ob+2}:{ob+3}], v[{rb_+2}:{rb_+3}]
            v_cvt_pk_bf16_f32 v{32+2*q}, v{ob}, v{ob+1}
            v_cvt_pk_bf16_f32 v{33+2*q}, v{ob+2}, v{ob+3}
            buffer_store_dwordx2 {v(32+2*q,2)}, v{115+j}, {srd(S_OUT)}, 0 offen offset:{nt*32}
            """)

    def build(self):
        A, o = self.A, self.o
        A.raw("; @launch grid=(256,1,1) block=(256,1,1) lds=163840")
        A.raw('.amdgcn_target "amdgcn-amd-amdhsa--gfx950"')
        A.raw(kernel_header(NAME))
        self.setup()
        if o.get("stamp"): A("v_mov_b32 v126, 0")
        self.stamp(0)
        self.gemm1()
        self.stamp(4)
        self.gelu()
        self.stamp(6)
        self.publish(F_H, sRB, sCB, "L_pubH")
        self.g2_setup()
        self.g2_prefill()
        self.stamp(7)
        self.conv()
        self.stamp(8)
        self.publish(F_Y, sCB, sRB, "L_pubY")
        self.stamp(9)
        self.gemm2()
        self.stamp(10)
        self.g2_final()
        self.stamp(11)
        A("s_waitcnt vmcnt(0)")
        self.stamp(12)
        self.stamp_flush()
        A("L_end:\ns_endpgm")
        A.raw(kernel_desc(NAME, 256, 256))
        return A.text()

if __name__ == "__main__":
    opts = json.loads(sys.argv[2]) if len(sys.argv) > 2 else {}
    open(sys.argv[1], "w").write(K(opts).build())
```

```python
import sys, json
sys.path.insert(0, "gen")
import importlib, kern
hdr = open('parallel_sum__ssm_conv_h3__mixer_channel_mlp__prompt.s.ref').read().split("; Override launch geometry")[0]
def mk(path, opts):
    open(path, "w").write(hdr + kern.K(opts).build())
if __name__ == "__main__":
    mk(sys.argv[1], json.loads(sys.argv[2]) if len(sys.argv) > 2 else {})
```
